```python
import torch

def _softmax(x, axis=-1):
    return torch.softmax(x, dim=axis)

def _gelu(x):
    return torch.nn.functional.gelu(x, approximate='tanh')

def _silu(x):
    return torch.nn.functional.silu(x)

def _sigmoid(x):
    return torch.sigmoid(x)

def _layernorm(x, axis=-1, eps=1e-05):
    m = x.mean(dim=axis, keepdim=True)
    v = x.var(dim=axis, keepdim=True, unbiased=False)
    return (x - m) / torch.sqrt(v + eps)

def _scatter_add(tgt, idx, src, axis=0):
    return tgt.clone().index_add_(axis, idx, src)

def _segment_sum(src, seg, n):
    out = torch.zeros((n,) + src.shape[1:], dtype=src.dtype)
    return out.index_add_(0, seg, src)

def _pad(x, pw):
    flat = tuple((v for pair in reversed(pw) for v in pair))
    return torch.nn.functional.pad(x, flat)
kernel_name = 'interleave_layers__memory_aug_recurrent_mem_tr__glu_gated_glu__prompt'

def setup_inputs():

    _w = lambda a: (lambda t: t.to(torch.bfloat16) if t.is_floating_point() else t)(torch.as_tensor(a))

    def _A_setup():
        B, S, Dm = (1, 2048, 640)
        H, Dh = (32, 192)
        M, seg = (8, 32)
        seg = min(seg, S)
        S = S // seg * seg
        return {'x': _w((lambda *s: torch.randn(*s, dtype=torch.bfloat16) * 0.05)(B, S, Dm)), 'mem0': _w((lambda *s: torch.randn(*s, dtype=torch.bfloat16) * 0.8)(B, M, Dm)), 'Wq': _w((lambda *s: torch.randn(*s, dtype=torch.bfloat16) * 0.8)(Dm, H, Dh) * Dm ** (-0.5)), 'Wk': _w((lambda *s: torch.randn(*s, dtype=torch.bfloat16) * 0.8)(Dm, H, Dh) * Dm ** (-0.5)), 'Wv': _w((lambda *s: torch.randn(*s, dtype=torch.bfloat16) * 0.8)(Dm, H, Dh) * Dm ** (-0.5)), 'Wo': _w((lambda *s: torch.randn(*s, dtype=torch.bfloat16) * 0.8)(H, Dh, Dm) * (H * Dh) ** (-0.5)), 'seg_len': seg}
    _A_in = _A_setup()

    def _B_setup():
        B, S, D, F = (1, 2048, 640, 1536)
        return {'x': _w((lambda *s: torch.randn(*s, dtype=torch.bfloat16) * 0.05)(B, S, D)), 'w_gate': _w((lambda *s: torch.randn(*s, dtype=torch.bfloat16) * 0.05)(D, F)), 'w_up': _w((lambda *s: torch.randn(*s, dtype=torch.bfloat16) * 0.05)(D, F)), 'w_down': _w((lambda *s: torch.randn(*s, dtype=torch.bfloat16) * 0.05)(F, D))}
    _B_in = _B_setup()
    return {'A_x': _A_in['x'], 'A_mem0': _A_in['mem0'], 'A_Wq': _A_in['Wq'], 'A_Wk': _A_in['Wk'], 'A_Wv': _A_in['Wv'], 'A_Wo': _A_in['Wo'], 'A_seg_len': _A_in['seg_len'], 'B_x': _B_in['x'], 'B_w_gate': _B_in['w_gate'], 'B_w_up': _B_in['w_up'], 'B_w_down': _B_in['w_down']}

def reference(A_x, A_mem0, A_Wq, A_Wk, A_Wv, A_Wo, A_seg_len, B_x, B_w_gate, B_w_up, B_w_down):

    def _A_ref(x, mem0, Wq, Wk, Wv, Wo, seg_len):
        B, S, Dm = x.shape
        H, Dh = (Wq.shape[1], Wq.shape[2])
        M = mem0.shape[1]
        scale = Dh ** (-0.5)
        n_seg = S // seg_len
        L = M + seg_len
        idx = torch.arange(L)
        mask = (idx[:, None] < M) | (idx[:, None] >= idx[None, :])
        mem = mem0
        outs = []
        for s in range(n_seg):
            xs = x[:, s * seg_len:(s + 1) * seg_len, :].clone()
            h = torch.concatenate([mem, xs], axis=1)
            q = torch.einsum('btd,dhe->bhte', h, Wq)
            k = torch.einsum('btd,dhe->bhte', h, Wk)
            v = torch.einsum('btd,dhe->bhte', h, Wv)
            scores = torch.einsum('bhqe,bhke->bhqk', q, k) * scale
            scores = torch.where(mask[None, None], scores, -1000000000.0)
            p = _softmax(scores, axis=-1)
            o = torch.einsum('bhqk,bhke->bhqe', p, v)
            o = torch.einsum('bhte,hed->btd', o, Wo)
            mem = o[:, :M, :].clone()
            outs.append(o[:, M:, :])
        return torch.concatenate(outs, axis=1)

    def _B_ref(x, w_gate, w_up, w_down):
        g = torch.einsum('bsd,df->bsf', x, w_gate)
        u = torch.einsum('bsd,df->bsf', x, w_up)
        h = _sigmoid(g) * u
        return torch.einsum('bsf,fd->bsd', h, w_down)
    x = A_x
    x = x + _A_ref(_layernorm(x, axis=-1), A_mem0, A_Wq, A_Wk, A_Wv, A_Wo, A_seg_len)
    x = x + _B_ref(_layernorm(x, axis=-1), B_w_gate, B_w_up, B_w_down)
    x = x + _A_ref(_layernorm(x, axis=-1), A_mem0, A_Wq, A_Wk, A_Wv, A_Wo, A_seg_len)
    x = x + _B_ref(_layernorm(x, axis=-1), B_w_gate, B_w_up, B_w_down)
    return x
```

```python
import re, sys
sys.setrecursionlimit(1000000)
SPECIAL = {"vcc": [("s", 106), ("s", 107)], "vcc_lo": [("s", 106)], "vcc_hi": [("s", 107)], "exec": [("s", 126), ("s", 127)],
           "exec_lo": [("s", 126)], "exec_hi": [("s", 127)], "m0": [("s", 124)], "scc": []}
RE_R = re.compile(r"^-?\|?(?:abs\()?([vas])(\d+)\)?\|?$")
RE_RR = re.compile(r"^-?([vas])\[(\d+):(\d+)\]$")
def regs(op):
    op = op.strip()
    if op in SPECIAL: return list(SPECIAL[op])
    m = RE_R.match(op)
    if m: return [(m.group(1), int(m.group(2)))]
    m = RE_RR.match(op)
    if m: return [(m.group(1), i) for i in range(int(m.group(2)), int(m.group(3)) + 1)]
    return []
TRANS = ("v_exp_", "v_log_", "v_rcp_", "v_rsq_", "v_sqrt_", "v_sin_", "v_cos_")
class I:
    def __init__(self, text):
        self.text = text
        t = text.split(";")[0].strip()
        self.mn, _, rest = t.partition(" ")
        rest = rest.strip()
        ops = [o.strip() for o in re.split(r",(?![^\[]*\])(?![^(]*\))", rest)] if rest else []
        self.mods = ""
        if ops:
            last = ops[-1].split()
            ops[-1] = last[0] if last else ""
            self.mods = " ".join(last[1:])
        self.ops = ops
        mn = self.mn
        self.valu = mn.startswith("v_") and not mn.startswith("v_mfma") and not mn.startswith("v_smfmac")
        self.mfma = mn.startswith("v_mfma") or mn.startswith("v_smfmac")
        self.ds = mn.startswith("ds_")
        self.vmem = mn.startswith(("buffer_", "global_"))
        self.smem = mn.startswith(("s_load", "s_memtime", "s_memrealtime", "s_buffer_load"))
        self.salu = mn.startswith("s_") and not self.smem
        self.trans = mn.startswith(TRANS)
        self.lds_dma = self.vmem and ("lds" in self.mods.split() or "_lds_" in mn)
        self.defs, self.uses = [], []
        self.A = self.B = self.C = []
        self.store_data = []
        R = [regs(o) for o in ops]
        flat = lambda L: [x for l in L for x in l]
        if self.mfma:
            self.defs = R[0]; self.A, self.B, self.C = R[1], R[2], R[3]
            self.uses = flat(R[1:]) + (R[0] if mn.startswith("v_smfmac") else [])
            self.passes = 8 if "32x32" in mn else 4
        elif self.valu:
            if mn.startswith(("v_permlane16_swap", "v_permlane32_swap", "v_swap")):
                self.defs = R[0] + R[1]; self.uses = R[0] + R[1]
            elif mn.startswith(("v_add_co", "v_sub_co", "v_addc_co", "v_subb_co", "v_subrev_co")):
                self.defs = R[0] + R[1]; self.uses = flat(R[2:])
            elif mn.startswith("v_nop"): pass
            else:
                self.defs = R[0]; self.uses = flat(R[1:])
                if mn.startswith(("v_fmac", "v_mac", "v_dot2c", "v_writelane")) or "dpp" in mn or "row_" in self.mods or "quad_perm" in self.mods: self.uses = self.uses + R[0]
                if mn.startswith("v_cndmask") and len(ops) == 3: self.uses += SPECIAL["vcc"]
            assert not mn.startswith("v_cmpx"), "cmpx not modelled"
        elif self.ds:
            if mn.startswith(("ds_read", "ds_bpermute", "ds_permute", "ds_swizzle")) or "_rtn" in mn:
                self.defs = R[0]; self.uses = flat(R[1:])
            else: self.uses = flat(R)
        elif self.vmem:
            if self.lds_dma: self.uses = flat(R) + SPECIAL["m0"]
            elif "_load" in mn: self.defs = R[0]; self.uses = flat(R[1:])
            elif "_store" in mn:
                self.uses = flat(R)
                self.store_data = R[0] if mn.startswith("buffer_") else R[1]
            elif "_atomic" in mn:
                ret = "sc0" in self.mods.split()
                if mn.startswith("buffer_"):
                    self.uses = flat(R); self.defs = R[0] if ret else []
                else:
                    if ret: self.defs = R[0]; self.uses = flat(R[1:])
                    else: self.uses = flat(R)
            elif mn.startswith(("buffer_inv", "buffer_wbl2")): pass
            else: raise ValueError(text)
        elif self.smem:
            self.defs = R[0]; self.uses = flat(R[1:])
        elif self.salu:
            if mn.startswith(("s_cmp", "s_bitcmp", "s_cbranch", "s_branch", "s_waitcnt", "s_barrier", "s_nop", "s_sleep", "s_endpgm", "s_setprio", "s_setreg")):
                self.uses = flat(R)
            else:
                self.defs = R[0]; self.uses = flat(R[1:])
                if "saveexec" in mn: self.defs = self.defs + SPECIAL["exec"]; self.uses += SPECIAL["exec"]
                if mn.startswith(("s_addk", "s_mulk", "s_cmov", "s_bitset")): self.uses += R[0]
            if mn.startswith("s_cbranch_vcc"): self.uses += SPECIAL["vcc"]
        else: raise ValueError("unknown instruction: " + text)
        self.dpp = self.valu and ("dpp" in mn or "row_" in self.mods or "quad_perm" in self.mods)
        self.wide_store = bool(self.store_data) and ("x4" in mn or "x3" in mn)
        self.states = 1
        if mn == "s_nop": self.states = int(ops[0], 0) + 1
        self.sdefs = set(self.defs); self.suses = set(self.uses)

def required(p, c):
    n = 0
    pv = {x for x in p.sdefs if x[0] in "va"}; ps = {x for x in p.sdefs if x[0] == "s"}
    if p.valu:
        if c.mfma and pv & (set(c.A) | set(c.B) | set(c.C)): n = max(n, 2)
        if c.valu and pv & c.suses:
            if c.mn.startswith(("v_readlane", "v_readfirstlane")): n = max(n, 1)
            if c.mn.startswith("v_permlane"): n = max(n, 2)
            if c.dpp: n = max(n, 2)
            if p.trans and not c.trans: n = max(n, 1)
            if ("op_sel" in p.mods and not p.mn.startswith("v_pk_")) or "dst_sel" in p.mods: n = max(n, 1)
        if ps & c.suses:
            if c.valu or c.mfma: n = max(n, 4 if c.mn.startswith(("v_readlane", "v_writelane")) else 2)
            if c.vmem: n = max(n, 5)
            if c.mn.startswith("s_cbranch_vcc"): n = max(n, 1)
    if p.mfma:
        big = {4: 8, 8: 12}[p.passes]
        if c.mfma:
            if pv & (set(c.A) | set(c.B)): n = max(n, big)
            if pv & set(c.C):
                if not (c.C == p.defs and c.mn == p.mn): n = max(n, {4: 6, 8: 10}[p.passes])
        elif (c.valu or c.ds or c.vmem) and pv & (c.suses | c.sdefs): n = max(n, big)
        if c.valu and set(p.C) & c.sdefs: n = max(n, {4: 3, 8: 7}[p.passes])
    if p.wide_store and set(p.store_data) & c.sdefs: n = max(n, 2 if (c.valu or c.mfma) else 1)
    if p.salu and ("s", 124) in p.sdefs and (c.lds_dma or "addtid" in c.mn): n = max(n, 1)
    return n

def parse(text):
    items = []
    for ln in text.split("\n"):
        t = ln.split(";")[0].strip()
        if not t: items.append(("X", ln)); continue
        if t.endswith(":"): items.append(("L", t[:-1])); continue
        if t.startswith("."): items.append(("X", ln)); continue
        items.append(("I", I(ln.strip())))
    return items

def build(items):
    ins, lab = [], {}
    for k, x in items:
        if k == "L": lab[x] = len(ins)
        elif k == "I": ins.append(x)
    succ = [[] for _ in ins]
    for i, x in enumerate(ins):
        if x.mn == "s_endpgm": continue
        if x.mn == "s_branch": succ[i] = [lab[x.ops[0]]]; continue
        if x.mn.startswith("s_cbranch"): succ[i] = [lab[x.ops[0]]]
        if i + 1 < len(ins): succ[i].append(i + 1)
    pred = [[] for _ in ins]
    for i, ss in enumerate(succ):
        for j in ss:
            if j < len(ins): pred[j].append(i)
    return ins, succ, pred

MAXD = 12
def fix_hazards(text, verbose=False):
    total = 0
    while True:
        items = parse(text)
        ins, succ, pred = build(items)
        need = {}
        for c_i, c in enumerate(ins):
            if c.salu and not c.mn.startswith("s_cbranch_vcc"): continue
            worst = 0
            stack = [(p, 0) for p in pred[c_i]]; seen = set()
            while stack:
                p_i, d = stack.pop()
                if (p_i, d) in seen: continue
                seen.add((p_i, d))
                p = ins[p_i]
                r = required(p, c)
                if r > d: worst = max(worst, r - d)
                d2 = d + p.states + need.get(p_i, 0)
                if d2 < MAXD: stack += [(q, d2) for q in pred[p_i]]
            if worst: need[c_i] = worst
        if not need: return text, total
        out, k = [], 0
        for kind, x in items:
            if kind == "L": out.append(x + ":")
            elif kind == "X": out.append(x)
            else:
                if k in need:
                    out.append(f"    s_nop {need[k]-1}")
                    total += 1
                    if verbose: print("nop", need[k], "before", x.text)
                out.append("    " + x.text); k += 1
        text = "\n".join(out)

RE_CNT = re.compile(r"(vmcnt|lgkmcnt)\((\d+)\)")
def check_waits(text, limit=40):
    items = parse(text)
    ins, succ, pred = build(items)
    errs = {}
    seen = set()
    stack = [(0, (), ())]
    while stack:
        pc, vq, lq = stack.pop()
        while True:
            key = (pc, vq, lq)
            if key in seen: break
            seen.add(key)
            if len(seen) > 3000000: raise RuntimeError("state explosion")
            x = ins[pc]
            if x.mn == "s_waitcnt":
                for nm, n in RE_CNT.findall(x.text):
                    n = int(n)
                    if nm == "vmcnt": vq = vq[len(vq) - n:] if n < len(vq) else vq
                    if nm == "vmcnt" and n == 0: vq = ()
                    if nm == "lgkmcnt":
                        if n == 0: lq = ()
                        elif not any(k == "s" for k, _ in lq): lq = lq[len(lq) - n:] if n < len(lq) else lq
            else:
                touched = x.suses | x.sdefs
                for k, d in vq:
                    t = d & (x.suses if (x.vmem and "repoll" in x.text) else touched)
                    if t: errs.setdefault(x.text + f"  @{pc}", f"vm-pending {sorted(t)[:2]}")
                for k, d in lq:
                    t = d & touched
                    if t: errs.setdefault(x.text + f"  @{pc}", f"lgkm-pending {sorted(t)[:2]}")
                if x.vmem and not x.mn.startswith(("buffer_inv", "buffer_wbl2")):
                    vq = (vq + (("v", frozenset(x.sdefs)),))[-64:]
                if x.ds: lq = (lq + (("d", frozenset(x.sdefs)),))[-16:]
                if x.smem: lq = (lq + (("s", frozenset(x.sdefs)),))[-16:]
            while vq and not vq[0][1]: vq = vq[1:]
            while lq and not lq[0][1]: lq = lq[1:]
            ss = succ[pc]
            if not ss: break
            for j in ss[1:]: stack.append((j, vq, lq))
            pc = ss[0]
    for k, e in list(errs.items())[:limit]: print("WAIT-ERR", e, "::", k)
    return len(errs)

def finalize(text, verbose=False, waits=True):
    text, n = fix_hazards(text, verbose)
    if not waits: return text
    bad = check_waits(text)
    assert bad == 0, f"{bad} waitcnt problems"
    return text
```

```python
NAME = "interleave_layers__memory_aug_recurrent_mem_tr__glu_gated_glu__prompt"
HEADER = """; Kernarg layout (112 bytes, ptrs only, base s[0:1]):
"""
def v(a, n=1): return f"v{a}" if n == 1 else f"v[{a}:{a+n-1}]"
def a(x, n=1): return f"a{x}" if n == 1 else f"a[{x}:{x+n-1}]"
def s(x, n=1): return f"s{x}" if n == 1 else f"s[{x}:{x+n-1}]"
def r(x, n=1):
    if x < 256:
        assert x + n <= 256
        return v(x, n)
    return a(x - 256, n)

class Asm:
    def __init__(self):
        self.lines = []
        self.uid = 0
    def __call__(self, text):
        for ln in text.strip("\n").split("\n"):
            self.lines.append("    " + ln.strip() if not ln.strip().endswith(":") else ln.strip())
    def label(self, name): self.lines.append(name + ":")
    def comment(self, t): self.lines.append("    ; " + t)
    def new_label(self, base):
        self.uid += 1
        return f"L_{base}_{self.uid}"
    def text(self): return "\n".join(self.lines) + "\n"

def kernel_begin(name):
    return f""".text
.globl {name}
.p2align 8
.type {name},@function
{name}:
"""
def kernel_desc(name, vgpr=512, accum=256, sgpr=102):
    return f""".section .rodata,"a"
.p2align 6
.amdhsa_kernel {name}
  .amdhsa_next_free_vgpr {vgpr}
  .amdhsa_next_free_sgpr {sgpr}
  .amdhsa_accum_offset {accum}
  .amdhsa_group_segment_fixed_size 0
  .amdhsa_kernarg_size 112
  .amdhsa_user_sgpr_count 2
  .amdhsa_user_sgpr_kernarg_segment_ptr 1
  .amdhsa_system_sgpr_workgroup_id_x 1
  .amdhsa_float_denorm_mode_32 3
.end_amdhsa_kernel
"""
def module(launches, kernels):
    out = HEADER
    if len(launches) == 1 and launches[0][0] == NAME + "_kernel":
        k, g, b, l = launches[0]
        out += f"; @launch grid=({g},1,1) block=({b},1,1) lds={l}\n"
    else:
        for k, g, b, l in launches:
            out += f"; @launch kernel={k} grid=({g},1,1) block=({b},1,1) lds={l}\n"
    out += '.amdgcn_target "amdgcn-amd-amdhsa--gfx950"\n'
    for name, body, vg, ac in kernels:
        out += kernel_begin(name) + body
    for name, body, vg, ac in kernels:
        out += kernel_desc(name, vg, ac)
    return out


class Emit(Asm):
    def __init__(self, prefix=""):
        super().__init__()
        self.prefix = prefix
        self.vq, self.lq = [], []
    def new_label(self, base):
        self.uid += 1
        return f"L_{self.prefix}{base}_{self.uid}"
    def vm(self, text, tag=None):
        self(text); self.vq.append(tag)
    def ds(self, text, tag=None):
        self(text); self.lq.append(tag)
    @staticmethod
    def _cut(q, tags, cap):
        tags = tags if isinstance(tags, list) else [tags]
        last = -1
        for i, t in enumerate(q):
            if t in tags: last = i
        if last < 0: return None, q
        n = len(q) - 1 - last
        if n > cap: n = cap
        return n, q[len(q) - n:] if n else []
    def wait(self, vm=None, ds=None):
        parts = []
        if vm is not None:
            if vm == 0: parts.append("vmcnt(0)"); self.vq = []
            else:
                n, self.vq = self._cut(self.vq, vm, 63)
                if n is not None: parts.append(f"vmcnt({n})")
        if ds is not None:
            if ds == 0: parts.append("lgkmcnt(0)"); self.lq = []
            else:
                n, self.lq = self._cut(self.lq, ds, 15)
                if n is not None: parts.append(f"lgkmcnt({n})")
        if parts: self("s_waitcnt " + " ".join(parts))
    def mfma(self, d, A_, B_, c=None, k=32):
        cc = "0" if c is None else r(c, 4)
        n = 4 if k == 32 else 2
        self(f"v_mfma_f32_16x16x{k}_bf16 {r(d,4)}, {r(A_,n)}, {r(B_,n)}, {cc}")
    def cvt(self, d, s0, s1=None):
        self(f"v_cvt_pk_bf16_f32 {r(d)}, {r(s0)}, {r(s0+1 if s1 is None else s1)}")

def interleave(main, fill, every=1, start=0):
    out, f = [], list(fill)
    for i, m in enumerate(main):
        out.append(m)
        if i >= start and (i - start) % every == every - 1 and f: out.append(f.pop(0))
    return out + f
```

```python
import sys, os
sys.path.insert(0, os.path.dirname(os.path.abspath(__file__)))
from common import *
import asmcheck, importlib

def dispatch(E, roles, test):
    E.label("L_dispatch")
    tstamp(E, test, 0)
    for name, lo, hi in (("R", R0, P0), ("P", P0, O0), ("O", O0, G0), ("G", G0, 256)):
        E(f"s_cmp_lt_u32 s{sROLE}, {hi}\n s_cbranch_scc1 L_role{name if name in roles else 'X'}")
    E("s_endpgm")

def idle_role(test):
    E = Emit("X_")
    E.label("L_roleX")
    arrive(E)
    wait_arrival(E, force_fallback=test.get("force_fallback", False))
    E("s_endpgm")
    return E.text()

def build(path, roles="R", test=None, verbose=False):
    test = test or {}
    E = Emit("E_")
    entry(E)
    dispatch(E, roles, test)
    surplus_and_fallback(E)
    fail_and_exit(E)
    body = E.text()
    if len(roles) < 4: body += idle_role(test)
    for n in roles: body += importlib.import_module('role_' + n.lower()).gen(test)
    body = asmcheck.finalize(body, verbose, waits=not (test.get('prof') or test.get('wall')))
    txt = module([(NAME + "_kernel", 256, 256, LDS_BYTES)], [(NAME + "_kernel", body, 512, 256)])
    open(path, "w").write(txt)
    return txt

if __name__ == "__main__":
    t = build("k.s", sys.argv[1] if len(sys.argv) > 1 else "R", {}, verbose="-v" in sys.argv)
    print(len(t), "bytes", t.count("\n"), "lines")
```

```python
from asmlib import *
from layout import *
LDS_BYTES = 163840
TICKET_LDS = LDS_BYTES - 16
SPIN = 1 << 19
sWS, sW, sWAVE, sROLE = 4, 8, 12, 13
sDBG = 16
sPASS = 18
sRETRY = 19
sP = 64

def ptr(i): return sP + 2 * i

def set_srd(E, srd, p, nbytes):
    E(f"s_mov_b32 s{srd}, s{p}\n s_and_b32 s{srd+1}, s{p+1}, 0xffff\n s_mov_b32 s{srd+2}, {nbytes}\n s_mov_b32 s{srd+3}, 0x20000")

def entry(E, force_fallback=False):
    E(f"""
    s_cmp_ge_u32 s2, 256
    s_cbranch_scc1 L_exit
    s_load_dwordx16 s[{sP}:{sP+15}], s[0:1], 0
    s_load_dwordx8 s[{sP+16}:{sP+23}], s[0:1], 64
    s_load_dwordx4 s[88:91], s[0:1], 96
    s_getreg_b32 s14, hwreg(HW_REG_XCC_ID, 0, 4)
    v_lshrrev_b32 v2, 6, v0
    v_and_b32 v0, 63, v0
    v_readfirstlane_b32 s{sWAVE}, v2
    s_and_b32 s14, s14, 7
    s_mov_b32 s{sPASS}, 0
    s_waitcnt lgkmcnt(0)
    s_mov_b64 s[{sDBG}:{sDBG+1}], s[88:89]
    """)
    set_srd(E, sWS, 90, WS_BYTES)
    set_srd(E, sW, 90, WS_BYTES)
    E(f"""
    v_mov_b32 v4, {TICKET_LDS}
    s_cmp_lg_u32 s{sWAVE}, 0
    s_cbranch_scc1 L_ticket_done
    v_mov_b32 v3, 1
    s_lshl_b32 s15, s14, 2
    v_mov_b32 v2, s15
    s_mov_b64 exec, 1
    global_atomic_add v5, v2, v3, s[{sDBG}:{sDBG+1}] sc0 sc1
    s_waitcnt vmcnt(0)
    ds_write_b32 v4, v5
    s_waitcnt lgkmcnt(0)
    s_mov_b64 exec, -1
L_ticket_done:
    s_barrier
    ds_read_b32 v5, v4
    s_waitcnt lgkmcnt(0)
    v_readfirstlane_b32 s15, v5
    s_lshl_b32 s{sROLE}, s14, 5
    s_add_u32 s{sROLE}, s{sROLE}, s15
    s_cmp_ge_u32 s15, 32
    s_cbranch_scc1 L_surplus
    """)

def surplus_and_fallback(E):
    E("L_surplus:")
    arrive(E)
    wait_arrival(E, check=False)
    E(f"""
L_fallback:
    s_barrier
    s_mov_b32 s{sPASS}, 1
    s_mov_b32 s{sROLE}, s2
    s_branch L_dispatch
    """)

def arrive(E):
    L = E.new_label("arr")
    E(f"""s_barrier
    s_cmp_lg_u32 s{sWAVE}, 0
    s_cbranch_scc1 {L}
    s_lshl_b32 s3, s{sPASS}, 2
    s_add_u32 s3, s3, {DBG_ARRIVE}
    v_mov_b32 v92, s3
    v_mov_b32 v93, 1
    s_mov_b64 exec, 1
    global_atomic_add v92, v93, s[{sDBG}:{sDBG+1}] sc1
    s_waitcnt vmcnt(0)
    s_mov_b64 exec, -1""")
    E.label(L)
    E.vq = None

def wait_arrival(E, check=True, force_fallback=False):
    L = E.new_label("warr")
    E(f"""s_lshl_b32 s3, s{sPASS}, 2
    s_add_u32 s3, s3, {DBG_ARRIVE}
    v_mov_b32 v92, s3
    v_lshlrev_b32 v94, 2, v0
    v_and_b32 v94, 28, v94
    s_mov_b32 s{sRETRY}, 0""")
    E.label(L)
    E(f"""global_load_dword v93, v92, s[{sDBG}:{sDBG+1}] sc1
    s_add_u32 s{sRETRY}, s{sRETRY}, 1
    s_cmp_ge_u32 s{sRETRY}, {SPIN}
    s_cbranch_scc1 L_fail
    s_waitcnt vmcnt(0)
    v_cmp_gt_u32 vcc, 256, v93
    s_cbranch_vccnz {L}""")
    if check:
        K = E.new_label("placed")
        E(f"""s_cmp_lg_u32 s{sPASS}, 0
        s_cbranch_scc1 {K}
        global_load_dword v93, v94, s[{sDBG}:{sDBG+1}] sc1
        s_waitcnt vmcnt(0)
        v_cmp_ne_u32 vcc, {33 if force_fallback else 32}, v93
        s_cbranch_vccnz L_fallback""")
        E.label(K)
    E.vq = []

def fail_and_exit(E):
    E(f"""
L_fail:
    s_waitcnt vmcnt(0) lgkmcnt(0)
    s_mov_b64 exec, 1
    v_mov_b32 v2, 128
    v_mov_b32 v3, s{sROLE}
    v_or_b32 v3, 0x10000, v3
    global_store_dword v2, v3, s[{sDBG}:{sDBG+1}]
    s_waitcnt vmcnt(0)
L_exit:
    s_endpgm
    """)

class Chunk:
    def __init__(self, srd, soff_reg, soff_add, voffs, vtr, nch, dests):
        self.srd, self.soff_reg, self.soff_add, self.voffs, self.vtr, self.nch, self.dests = srd, soff_reg, soff_add, voffs, vtr, nch, dests

def dma_offsets(E, regs, nch, stride, tmp, pair=False):
    magic = (1 << 16) // nch + 1
    for n, d in enumerate(regs):
        E(f"""v_add_u32 v{tmp}, {64*n}, v0
        v_mul_u32_u24 v{tmp+1}, {magic}, v{tmp}
        v_lshrrev_b32 v{tmp+1}, 16, v{tmp+1}
        v_mul_u32_u24 v{d}, {nch}, v{tmp+1}
        v_sub_u32 v{d}, v{tmp}, v{d}
        v_lshrrev_b32 v{d}, {1 if pair else 0}, v{d}
        v_lshlrev_b32 v{d}, 4, v{d}
        v_mul_u32_u24 v{tmp+1}, {stride}, v{tmp+1}
        v_add_u32 v{d}, v{d}, v{tmp+1}""")
    for c in range(64 * len(regs)): assert (c * magic) >> 16 == c // nch

def tr_addr(E, d, pitch, sbase, tmp):
    E(f"""v_lshrrev_b32 v{d}, 2, v0
    v_mul_u32_u24 v{d}, {pitch}, v{d}
    v_and_b32 v{tmp}, 3, v0
    v_lshl_add_u32 v{d}, v{tmp}, 3, v{d}
    v_add_u32 v{d}, s{sbase}, v{d}""")

def load_chunks(E, chunks, sbase, area, tmp, after_first=None):
    pos, place = 0, []
    for c in chunks:
        sz = c.nch * 512
        if pos + sz > area: pos = 0
        place.append((pos, sz)); pos += sz
    def issue(i):
        c = chunks[i]
        if c.soff_add: E(f"s_add_u32 s{c.soff_reg}, s{c.soff_reg}, {c.soff_add}")
        for n in range(c.nch // 2):
            E(f"s_add_u32 m0, s{sbase}, {place[i][0] + 1024*n}")
            if isinstance(c.srd, int):
                E.vm(f"buffer_load_dwordx4 v{c.voffs[n]}, s[{c.srd}:{c.srd+3}], s{c.soff_reg} offen lds", ("w", i))
            else:
                for srd, m in zip(c.srd, (0x55555555, 0xaaaaaaaa)):
                    E(f"s_mov_b32 exec_lo, {m}\n s_mov_b32 exec_hi, {m}")
                    E.vm(f"buffer_load_dwordx4 v{c.voffs[n]}, s[{srd}:{srd+3}], s{c.soff_reg} offen lds", ("w", i))
                E("s_mov_b64 exec, -1")
    def overlaps(i, j):
        (p, s1), (q, s2) = place[i], place[j]
        return p < q + s2 and q < p + s1
    nxt = 0
    for i, c in enumerate(chunks):
        while nxt < len(chunks) and not any(overlaps(nxt, j) for j in range(i, nxt)) and len(E.vq) + chunks[nxt].nch <= 60:
            issue(nxt); nxt += 1
        E.wait(vm=("w", i))
        if i == 0 and after_first:
            q = list(E.vq); after_first(); E.wait(vm=0) if False else None
            E.vq = q
        pitch = c.nch * 16
        pend = []
        for t, d in enumerate(c.dests):
            dst = d if isinstance(d, int) else tmp + 4 * (len(pend) % 4)
            if not isinstance(d, int):
                if len(pend) % 4 == 0 and pend: E.wait(ds=0)
            E.ds(f"ds_read_b64_tr_b16 {r(dst,2)}, v{c.vtr} offset:{place[i][0] + 32*t}")
            E.ds(f"ds_read_b64_tr_b16 {r(dst+2,2)}, v{c.vtr} offset:{place[i][0] + 32*t + 16*pitch}")
            if not isinstance(d, int):
                pend.append((dst, d))
                if len(pend) % 4 == 0 or t == len(c.dests) - 1:
                    E.wait(ds=0)
                    k0 = (len(pend) - 1) // 4 * 4
                    for dd, (_, va, off) in pend[k0:]:
                        E.ds(f"ds_write_b128 v{va}, {r(dd,4)} offset:{off}")
        E.wait(ds=0)

class Prof:
    def __init__(self, E, on, base=64, vacc=90):
        self.E, self.on, self.base, self.names, self.vacc = E, on, base, [], vacc
    def start(self):
        if self.on: self.E(f"v_mov_b32 v{self.vacc}, 0\n v_mov_b32 v{self.vacc+1}, 0\n s_mov_b32 s99, 0\n s_mov_b32 s100, 0\n s_mov_b32 s101, 0")
    def stamp(self, name):
        if not self.on: return
        k = len(self.names); assert self.base + 2 * k + 1 < 96
        self.names.append(name)
        self.E(f"{'s_memrealtime' if self.on == 2 else 's_memtime'} s[{self.base+2*k}:{self.base+2*k+1}]")
    def close(self, step=None):
        if not self.on: return
        E = self.E
        self.stamp("end")
        E("s_waitcnt lgkmcnt(0)")
        if self.on == 2:
            for k in range(len(self.names)): E(f"v_writelane_b32 v{self.vacc+1}, s{self.base+2*k}, {k}")
            E(f"""s_lshl_b32 s{self.base}, s{sROLE}, 2
            s_add_u32 s{self.base}, s{self.base}, s{sWAVE}
            s_lshl_b32 s{self.base}, s{self.base}, 8
            s_add_u32 s{self.base}, s{self.base}, s{step}
            s_lshl_b32 s{self.base}, s{self.base}, 6
            s_add_u32 s{self.base}, s{self.base}, {END + (1 << 20)}
            v_mbcnt_lo_u32_b32 v{self.vacc}, -1, 0
            v_lshlrev_b32 v{self.vacc}, 2, v{self.vacc}
            s_mov_b64 exec, 0xffff
            buffer_store_dword v{self.vacc+1}, v{self.vacc}, s[{sWS}:{sWS+3}], s{self.base} offen
            s_mov_b64 exec, -1""")
            return
        for k in range(len(self.names) - 1):
            E(f"s_sub_u32 s{self.base+2*k}, s{self.base+2*k+2}, s{self.base+2*k}\n v_writelane_b32 v{self.vacc+1}, s{self.base+2*k}, {k}")
        E(f"v_add_u32 v{self.vacc}, v{self.vacc}, v{self.vacc+1}")
    def dump(self, vl16, w):
        if not self.on: return
        self.E(f"""s_mov_b64 exec, -1
        v_writelane_b32 v{self.vacc}, s99, 61
        v_writelane_b32 v{self.vacc}, s100, 62
        v_writelane_b32 v{self.vacc}, s101, 63
        s_lshl_b32 s3, s{sROLE}, 10
        s_lshl_b32 s99, s{sWAVE}, 8
        s_add_u32 s3, s3, s99
        s_add_u32 s3, s3, {END}
        v_lshrrev_b32 v{self.vacc+1}, 2, v{vl16}
        buffer_store_dword v{self.vacc}, v{self.vacc+1}, s[{sWS}:{sWS+3}], s3 offen""")
PROF_NAMES = {}

def tstamp(E, test, idx, vt=92):
    if not test.get("wall"): return
    K = E.new_label("ts")
    E(f"""s_cmp_lg_u32 s{sWAVE}, 0
    s_cbranch_scc1 {K}
    s_waitcnt lgkmcnt(0)
    s_memrealtime s[100:101]
    s_waitcnt lgkmcnt(0)
    v_mov_b32 v{vt}, s100
    s_lshl_b32 s100, s{sROLE}, 4
    s_add_u32 s100, s100, {TIMING + 0x800 + 4 * idx}
    v_mov_b32 v{vt+1}, 0
    s_mov_b64 exec, 1
    buffer_store_dword v{vt}, v{vt+1}, s[{sWS}:{sWS+3}], s100 offen
    s_waitcnt vmcnt(0)
    s_mov_b64 exec, -1""")
    E.label(K)
```

```python
LAG = 5
NSTEP = 64 + LAG
KB = 1024
FLAGS = 0
TIMING = 0x20000
HB = 0x22000
HR = 0x40000
SA = HR + 80 * 8192
CL = SA + 64 * 4096
PB = CL + 4 * 32768
CR = PB + 2 * 32 * 20480
KVM = CR + 80 * 2 * 20480
KV = KVM + 80 * 64 * 6144
QX = KV + 2 * 64 * 64 * 12288
XROW = 2048 * 1280
XNA = QX + 2 * 64 * 32 * 12288
XNB = XNA + 2 * XROW
X1 = XNB + 2 * XROW
X2 = X1 + 2 * XROW
OPB = 2 * 32 * 32 * 1280; GPB = 2 * 32 * 16 * 1280
OP = X2 + XROW
GP = OP + 2 * OPB
END = GP + 2 * GPB
WS_BYTES = 268435456
assert END <= WS_BYTES
R0, P0, O0, G0 = 0, 64, 160, 224
DBG_TICKET = 0
DBG_ARRIVE = 64
if __name__ == "__main__":
    for k, x in list(globals().items()):
        if isinstance(x, int): print(k, hex(x), x)
```

```python
import os, sys
sys.path.insert(0, os.path.dirname(os.path.abspath(__file__)))
import build
from asmlib import NAME
out = os.path.join(os.path.dirname(os.path.dirname(os.path.abspath(__file__))), NAME + ".s")
t = build.build(out, "RPOG", {})
print(out, len(t), "bytes")
```
